```python
import torch

def _softmax(x, axis=-1):
    return torch.softmax(x, dim=axis)
def _gelu(x):
    return torch.nn.functional.gelu(x, approximate="tanh")
def _silu(x):
    return torch.nn.functional.silu(x)
def _sigmoid(x):
    return torch.sigmoid(x)
def _layernorm(x, axis=-1, eps=1e-5):
    m = x.mean(dim=axis, keepdim=True)
    v = x.var(dim=axis, keepdim=True, unbiased=False)
    return (x - m) / torch.sqrt(v + eps)
def _scatter_add(tgt, idx, src, axis=0):
    return tgt.clone().index_add_(axis, idx, src)
def _segment_sum(src, seg, n):
    out = torch.zeros((n,) + src.shape[1:], dtype=src.dtype)
    return out.index_add_(0, seg, src)
def _pad(x, pw):
    flat = tuple(v for pair in reversed(pw) for v in pair)
    return torch.nn.functional.pad(x, flat)

kernel_name = 'parallel_sum__ssm_conv_h3__dense_activation_relu__prompt'

def setup_inputs():

    _w = (lambda a: (lambda t: t.to(torch.bfloat16) if t.is_floating_point() else t)(torch.as_tensor(a)))
    def _A_setup():
        B, S, D = 1, 2048, 1024
        ks = 4
        return {
            "q": _w((lambda *s: torch.randn(*s, dtype=torch.bfloat16) * 0.05)(B, S, D)),
            "k": _w((lambda *s: torch.randn(*s, dtype=torch.bfloat16) * 0.8)(B, S, D)),
            "v": _w((lambda *s: torch.randn(*s, dtype=torch.bfloat16) * 0.8)(B, S, D)),
            "shift_k": _w((lambda *s: torch.randn(*s, dtype=torch.bfloat16) * 0.8)(D, ks) * 0.5),
            "ssm_k": _w((lambda *s: torch.randn(*s, dtype=torch.bfloat16) * 0.8)(D, S) * (1.0 / S ** 0.5)),
            "ssm_D": _w((lambda *s: torch.randn(*s, dtype=torch.bfloat16) * 0.8)(D)),
        }
    _A_in = _A_setup()

    def _B_setup():
        B, S, D, Dff = 1, 2048, 1024, 3584
        return {
            "x": _w((lambda *s: torch.randn(*s, dtype=torch.bfloat16) * 0.05)(B, S, D)),
            "w1": _w((lambda *s: torch.randn(*s, dtype=torch.bfloat16) * 0.05)(D, Dff)),
            "w2": _w((lambda *s: torch.randn(*s, dtype=torch.bfloat16) * 0.05)(Dff, D)),
        }
    _B_in = _B_setup()

    return {
        "A_q": _A_in["q"],
        "A_k": _A_in["k"],
        "A_v": _A_in["v"],
        "A_shift_k": _A_in["shift_k"],
        "A_ssm_k": _A_in["ssm_k"],
        "A_ssm_D": _A_in["ssm_D"],
        "B_x": _B_in["x"],
        "B_w1": _B_in["w1"],
        "B_w2": _B_in["w2"],
    }

def reference(A_q, A_k, A_v, A_shift_k, A_ssm_k, A_ssm_D, B_x, B_w1, B_w2):
    def _A_ref(q, k, v, shift_k, ssm_k, ssm_D):
        B, S, D = q.shape
        ks = shift_k.shape[-1]
        k_pad = _pad(k, ((0, 0), (ks - 1, 0), (0, 0)))
        k_shift = torch.zeros_like(k)
        for t in range(ks):
            k_shift = k_shift + k_pad[:, t:t + S, :] * shift_k[:, ks - 1 - t][None, None, :]
        kv = k_shift * v
        L = 2 * S
        kv_pad = _pad(kv, ((0, 0), (0, S), (0, 0)))
        kf_pad = _pad(ssm_k, ((0, 0), (0, S)))
        kv_f = (lambda x, axes=(-2,-1): torch.fft.rfft2(x.float(), dim=axes))(kv_pad[:, None, :, :], axes=(1, 2))
        kf_f = (lambda x, axes=(-2,-1): torch.fft.rfft2(x.float(), dim=axes))(kf_pad[:, None, :], axes=(1, 2))
        kf_f = (lambda x, *d: x.permute(*d))(kf_f, 1, 2, 0)
        y_f = kv_f * kf_f[None, :, :, :]
        y = (lambda x, s, axes=(-2,-1): torch.fft.irfft2(x, s=s, dim=axes).to(torch.bfloat16))(y_f, (1, L), axes=(1, 2))[:, 0, :S, :]
        y = y + kv * ssm_D[None, None, :]
        return q * y

    def _B_ref(x, w1, w2):
        h = torch.einsum("bsd,df->bsf", x, w1)
        zero = torch.zeros_like(h)
        h = torch.maximum(h, zero)
        return torch.einsum("bsf,fd->bsd", h, w2)

    x = A_q
    xn = _layernorm(x, axis=-1)
    return x + _A_ref(xn, A_k, A_v, A_shift_k, A_ssm_k, A_ssm_D) + _B_ref(xn, B_w1, B_w2)
```

```python
class Asm:
    def __init__(self):
        self.L = []
        self.uid = 0
    def __call__(self, s):
        for line in s.split("\n"):
            line = line.strip()
            if line: self.L.append(line)
    def label(self, name): self.L.append(name + ":")
    def newlabel(self, p="L"):
        self.uid += 1
        return f"{p}_{self.uid}"
    def text(self): return "\n".join(self.L) + "\n"
    def comment(self, s): self.L.append("; " + s)

def vr(a, n=1):
    return f"v{a}" if n == 1 else f"v[{a}:{a+n-1}]"
def sr(a, n=1):
    return f"s{a}" if n == 1 else f"s[{a}:{a+n-1}]"
def ar(a, n=1):
    return f"a{a}" if n == 1 else f"a[{a}:{a+n-1}]"

def interleave(mfmas, fillers, start=0, per=1, stride=1):
    out = []
    fi = 0
    for i, m in enumerate(mfmas):
        out.append(m)
        if i >= start and (i - start) % stride == 0:
            for _ in range(per):
                if fi < len(fillers):
                    out.extend(fillers[fi]); fi += 1
    while fi < len(fillers):
        out.extend(fillers[fi]); fi += 1
    return out

def place(mfmas, slots):
    out = list(slots.get(-1, []))
    for i, m in enumerate(mfmas):
        out.append(m)
        out.extend(slots.get(i, []))
    return out

def kernel_header(a, name):
    a(".text"); a(f".globl {name}"); a(".p2align 8"); a(f".type {name},@function"); a.label(name)

def kernel_desc(a, name, vgpr=256, sgpr=102, accum=256, kernarg=96):
    a('.section .rodata,"a"'); a(".p2align 6"); a(f".amdhsa_kernel {name}")
    a(f".amdhsa_next_free_vgpr {vgpr}"); a(f".amdhsa_next_free_sgpr {sgpr}"); a(f".amdhsa_accum_offset {accum}")
    a(".amdhsa_group_segment_fixed_size 0"); a(f".amdhsa_kernarg_size {kernarg}"); a(".amdhsa_user_sgpr_count 2")
    a(".amdhsa_user_sgpr_kernarg_segment_ptr 1"); a(".amdhsa_system_sgpr_workgroup_id_x 1")
    a(".end_amdhsa_kernel")
    a(".text")

import re
_REG = re.compile(r"(?<![\w.])(v|s|a)\[(\d+):(\d+)\]|(?<![\w.\[])(v|s|a)(\d+)(?![\w:\]])|\b(vcc|m0|exec)\b")
def _regs(tok):
    out = set()
    for m in _REG.finditer(tok):
        if m.group(1):
            for i in range(int(m.group(2)), int(m.group(3)) + 1): out.add(m.group(1) + str(i))
        elif m.group(4): out.add(m.group(4) + m.group(5))
        else: out.add(m.group(6))
    return out
_TRANS = ("v_exp_", "v_log_", "v_rcp_", "v_rsq_", "v_sqrt_", "v_sin_", "v_cos_")
def _parse(line):
    t = line.split(";")[0].strip()
    if not t or t.endswith(":") or t.startswith("."): return None
    parts = t.split(None, 1)
    op = parts[0]; rest = parts[1] if len(parts) > 1 else ""
    ops = [o.strip() for o in rest.split(",")] if rest else []
    d = dict(op=op, w=set(), r=set(), cls="other", line=line)
    def R(i): return _regs(ops[i].split()[0]) if i < len(ops) and ops[i] else set()
    def Rfull(i): return _regs(ops[i]) if i < len(ops) else set()
    if op.startswith("v_mfma"):
        d.update(cls="mfma", w=R(0), a=R(1), b=R(2), c=R(3)); d["r"] = d["a"] | d["b"] | d["c"]
    elif op.startswith("v_readfirstlane") or op.startswith("v_readlane"):
        d.update(cls="valu", sub="readlane", w=R(0), r=set().union(*[R(i) for i in range(1, len(ops))]))
    elif op.startswith("v_permlane"):
        d.update(cls="valu", sub="permlane", w=R(0) | R(1), r=R(0) | R(1))
    elif op.startswith("v_cmp"):
        d.update(cls="valu", w=R(0), r=set().union(*[R(i) for i in range(1, len(ops))]))
    elif op.startswith("v_"):
        w = R(0); first = 1
        if op.startswith(("v_add_co", "v_sub_co", "v_addc_co", "v_subb_co", "v_subrev_co", "v_div_scale")): w |= R(1); first = 2
        r = set().union(*[R(i) for i in range(first, len(ops))]) if len(ops) > first else set()
        if op.startswith(("v_fmac", "v_dot2c", "v_pk_fmac", "v_accvgpr")) or "dpp" in op or "row_" in rest or "quad_perm" in rest: r |= R(0)
        if op.startswith("v_cndmask") and len(ops) == 3: r.add("vcc")
        if op.startswith("v_cndmask_b32") and "vcc" in rest: r.add("vcc")
        d.update(cls="valu", w=w, r=r)
        if op.startswith(_TRANS): d["sub"] = "trans"
        if "_dpp" in op or "row_" in rest or "quad_perm" in rest: d["sub"] = "dpp"
    elif op.startswith("ds_"):
        if op.startswith(("ds_read", "ds_bpermute", "ds_swizzle", "ds_permute")) or "_rtn" in op:
            d.update(cls="ds", w=R(0), r=set().union(*[R(i) for i in range(1, len(ops))]))
        else:
            d.update(cls="ds", r=set().union(*[R(i) for i in range(len(ops))]))
    elif op.startswith(("buffer_", "global_")):
        lds = rest.rstrip().endswith("lds") or "load_lds" in op
        allr = set().union(*[R(i) for i in range(len(ops))]) if ops else set()
        if "load" in op and not lds:
            d.update(cls="vmem", w=R(0), r=set().union(*[R(i) for i in range(1, len(ops))]))
        else:
            d.update(cls="vmem", r=allr)
            if lds: d["r"] = allr | {"m0"}; d["sub"] = "ldsdma"
            if "store" in op and ("x3" in op or "x4" in op): d["sub"] = "widestore"; d["data"] = R(0)
    elif op.startswith("s_"):
        d["cls"] = "salu"
        if op in ("s_nop",): d["cls"] = "nop"; d["n"] = int(ops[0], 0) + 1
        elif op.startswith(("s_cmp", "s_cbranch", "s_branch", "s_waitcnt", "s_barrier", "s_endpgm", "s_sleep", "s_setprio")):
            d["r"] = set().union(*[R(i) for i in range(len(ops))]) if ops else set()
        else:
            d.update(w=R(0), r=set().union(*[R(i) for i in range(1, len(ops))]) if len(ops) > 1 else set())
    return d
def _isv(r): return r[0] in "va" and r[1:].isdigit()
def _iss(r): return (r[0] == "s" and r[1:].isdigit()) or r == "vcc"
def need(p, c):
    n = 0
    pv, cv = p["cls"], c["cls"]
    if pv == "valu":
        wv = {r for r in p["w"] if _isv(r)}; wsg = {r for r in p["w"] if _iss(r)}
        if cv == "mfma" and wv & c["r"]: n = max(n, 2)
        if cv == "valu":
            sub = c.get("sub")
            if sub == "readlane" and wv & c["r"]: n = max(n, 1)
            if sub in ("permlane", "dpp") and wv & c["r"]: n = max(n, 2)
            if wsg & c["r"]: n = max(n, 4 if sub == "readlane" else 2)
            if p.get("sub") == "trans" and sub != "trans" and wv & c["r"]: n = max(n, 1)
            if p.get("sub") == "trans" and sub == "trans" and wv & c["r"]: n = max(n, 1)
        if cv == "vmem" and wsg & c["r"]: n = max(n, 5)
        if cv == "salu" and wsg & c["r"]: n = max(n, 4)
    if pv == "mfma":
        if cv == "mfma":
            if p["w"] & (c["a"] | c["b"]): n = max(n, 8)
            if p["w"] & c["c"] and p["w"] != c["c"]: n = max(n, 6)
            if p["w"] & c["w"] and p["w"] != c["c"]: n = max(n, 6)
        elif cv in ("valu", "ds", "vmem"):
            if p["w"] & (c["r"] | c["w"]): n = max(n, 8)
            if cv == "valu" and p["c"] & c["w"]: n = max(n, 3)
    if pv == "vmem" and p.get("sub") == "widestore" and cv == "valu" and p["data"] & c["w"]: n = max(n, 2)
    if pv == "salu" and "m0" in p["w"] and c.get("sub") == "ldsdma": n = max(n, 1)
    return n
def fix_hazards(lines, verbose=False):
    out = []; hist = []
    added = 0
    for line in lines:
        d = _parse(line)
        if d is None:
            out.append(line); continue
        if d["cls"] == "nop":
            hist = [(p, k + d["n"]) for p, k in hist if k + d["n"] < 12]
            out.append(line); continue
        req = 0
        for p, k in hist:
            n = need(p, d)
            if n > k: req = max(req, n - k)
        if req:
            out.append(f"s_nop {req-1}"); added += 1
            if verbose: print("hazard nop", req, "before", line)
            hist = [(p, k + req) for p, k in hist]
        out.append(line)
        hist = [(p, k + 1) for p, k in hist if k + 1 < 12]
        hist.append((d, 0))
    return out, added
```

```python
import sys
from asmlib import *

NAME = "parallel_sum__ssm_conv_h3__dense_activation_relu__prompt_kernel"
XN_OFF = 0
H_OFF  = 4 << 20
UT_OFF = 20 << 20
YT_OFF = 24 << 20
PX_OFF = 28 << 20
FL_OFF = 40 << 20
ST_OFF = 44 << 20
WS_SIZE = 48 << 20
XNF, UF, HF, YF, PF = FL_OFF, FL_OFF + 4096, FL_OFF + 8192, FL_OFF + 12288, FL_OFF + 16384
SLOT1 = 45056; B1OFF = 16384
UTILE = 135168
FBASE = 65536; FCH = 16640; FCP = 4160
URBASE = 132096; URCH = 5120
MISC = 152576
SLOT2 = 32768; B2OFF = 16384
XT = 131072; XNT = 147456; YTL = 0
LDS_SIZE = 163840
POLL_MAX = 20000

sX, sK, sV, sSK, sSSM, sD, sW1, sW2, sOUT, sDBG, sWS = 4, 6, 8, 10, 12, 14, 16, 18, 20, 22, 24
SRD_WS = 28
sWave, sRb1, sJ, sRb2, sC, sKh, sLw = 32, 33, 34, 35, 36, 37, 38
sNon = 40
sT = 42
SRD_A, SRD_B, SRD_C, SRD_D = 60, 64, 68, 72
sSlotR, sSlotW, sKA, sKB, sIt = 76, 77, 78, 79, 80
sM0A, sM0B = 81, 82
sWs_, sWf = 83, 84
sPoll = 85
sStamp = 86
vLane = 1

def srd(a, dst, ptr, size, add=None, sub_size=True):
    if add is None:
        a(f"s_mov_b32 s{dst}, s{ptr}"); a(f"s_mov_b32 s{dst+1}, s{ptr+1}")
        a(f"s_mov_b32 s{dst+2}, {size}")
    else:
        a(f"s_add_u32 s{dst}, s{ptr}, {add}"); a(f"s_addc_u32 s{dst+1}, s{ptr+1}, 0")
        if sub_size: a(f"s_sub_u32 s{dst+2}, {size}, {add}")
        else: a(f"s_mov_b32 s{dst+2}, {size}")
    a(f"s_mov_b32 s{dst+3}, 0x20000")

def poll(a, vtmp, soff, nflags, vOffTmp, tag):
    L = a.newlabel("L_poll"); Ld = a.newlabel("L_polld")
    a(f"v_min_u32 v{vOffTmp}, {nflags-1}, v{vLane}"); a(f"v_lshlrev_b32 v{vOffTmp}, 3, v{vOffTmp}")
    a(f"s_mov_b32 s{sPoll}, {POLL_MAX}")
    a.label(L)
    a(f"buffer_load_dwordx2 v[{vtmp}:{vtmp+1}], v{vOffTmp}, s[{SRD_WS}:{SRD_WS+3}], {soff} offen sc1")
    a("s_waitcnt vmcnt(0)")
    a(f"v_cmp_eq_u32 vcc, s{sNon}, v{vtmp}")
    a(f"v_cmp_eq_u32 s[{sT+16}:{sT+17}], s{sNon+1}, v{vtmp+1}")
    a("s_nop 3")
    a(f"s_and_b64 vcc, vcc, s[{sT+16}:{sT+17}]")
    a("s_cmp_eq_u64 vcc, exec")
    a(f"s_cbranch_scc1 {Ld}")
    a(f"s_sub_u32 s{sPoll}, s{sPoll}, 1"); a(f"s_cmp_eq_u32 s{sPoll}, 0"); a(f"s_cbranch_scc1 {Ld}")
    a("s_sleep 1")
    a(f"s_branch {L}")
    a.label(Ld)

def flag_write(a, vtmp, soff):
    a(f"v_mov_b32 v{vtmp}, s{sNon}"); a(f"v_mov_b32 v{vtmp+1}, s{sNon+1}"); a(f"v_mov_b32 v{vtmp+2}, 0")
    a("s_mov_b64 exec, 1")
    a(f"buffer_store_dwordx2 v[{vtmp}:{vtmp+1}], v{vtmp+2}, s[{SRD_WS}:{SRD_WS+3}], {soff} offen sc1")
    a("s_mov_b64 exec, -1")

class Gen:
    def __init__(self, upto="all", stamps=False, **opt):
        self.a = Asm(); self.upto = upto; self.stamps = stamps; self.opt = opt
        self.order = ["ln", "u", "g1", "conv", "g2", "all"]
    def done_after(self, ph):
        return self.order.index(self.upto) <= self.order.index(ph)
    def stamp(self, i):
        if self.stamps:
            self.a(f"s_memrealtime s[{sStamp+2*i}:{sStamp+2*i+1}]")

    def prologue(self):
        a = self.a
        a("s_cmp_ge_u32 s2, 256"); a("s_cbranch_scc1 L_exit")
        self.stamp(0)
        a("s_load_dwordx8 s[4:11], s[0:1], 0")
        a("s_load_dwordx4 s[12:15], s[0:1], 32")
        a("s_load_dwordx8 s[16:23], s[0:1], 56")
        a("s_load_dwordx2 s[24:25], s[0:1], 88")
        a(f"v_and_b32 v{vLane}, 63, v0"); a("v_lshrrev_b32 v2, 6, v0")
        a(f"v_readfirstlane_b32 s{sWave}, v2")
        a(f"s_and_b32 s{sT}, s2, 7"); a(f"s_lshr_b32 s{sT+1}, s2, 3")
        a(f"s_and_b32 s{sT+2}, s{sT}, 1"); a(f"s_lshl_b32 s{sT+2}, s{sT+2}, 3"); a(f"s_and_b32 s{sT+3}, s{sT+1}, 7"); a(f"s_add_u32 s{sRb1}, s{sT+2}, s{sT+3}")
        a(f"s_lshr_b32 s{sT+2}, s{sT}, 1"); a(f"s_lshl_b32 s{sT+2}, s{sT+2}, 2"); a(f"s_lshr_b32 s{sT+3}, s{sT+1}, 3"); a(f"s_add_u32 s{sJ}, s{sT+2}, s{sT+3}")
        a(f"s_and_b32 s{sT+2}, s{sT}, 3"); a(f"s_lshl_b32 s{sT+2}, s{sT+2}, 2"); a(f"s_and_b32 s{sT+3}, s{sT+1}, 3"); a(f"s_add_u32 s{sRb2}, s{sT+2}, s{sT+3}")
        a(f"s_lshr_b32 s{sT+2}, s{sT}, 2"); a(f"s_lshl_b32 s{sT+2}, s{sT+2}, 2"); a(f"s_bfe_u32 s{sT+3}, s{sT+1}, 0x20002"); a(f"s_add_u32 s{sC}, s{sT+2}, s{sT+3}")
        a(f"s_lshr_b32 s{sKh}, s{sT+1}, 4")
        a(f"s_and_b32 s{sLw}, s{sWave}, 3")
        a(f"s_and_b32 s{sWs_}, s{sLw}, 1"); a(f"s_lshr_b32 s{sWf}, s{sLw}, 1")
        a("s_waitcnt lgkmcnt(0)")
        srd(a, SRD_WS, sWS, WS_SIZE)
        a(f"s_cmp_ge_u32 s{sWave}, 6"); a("s_cbranch_scc1 L_roleX")
        a(f"s_cmp_ge_u32 s{sWave}, 4"); a("s_cbranch_scc1 L_roleL")

    def get_nonce(self, vt):
        a = self.a
        a(f"v_mov_b32 v{vt+2}, {MISC}")
        a(f"ds_read_b64 v[{vt}:{vt+1}], v{vt+2}")
        a("s_waitcnt lgkmcnt(0)")
        a(f"v_readfirstlane_b32 s{sNon}, v{vt}"); a(f"v_readfirstlane_b32 s{sNon+1}, v{vt+1}")

    def reduce64(self, v, t):
        a = self.a
        a(f"v_add_f32_dpp v{v}, v{v}, v{v} quad_perm:[1,0,3,2] row_mask:0xf bank_mask:0xf")
        a(f"v_add_f32_dpp v{v}, v{v}, v{v} quad_perm:[2,3,0,1] row_mask:0xf bank_mask:0xf")
        a(f"v_add_f32_dpp v{v}, v{v}, v{v} row_ror:8 row_mask:0xf bank_mask:0xf")
        a(f"v_mov_b32 v{t}, v{v}"); a(f"v_permlane16_swap_b32 v{v}, v{t}"); a(f"v_add_f32 v{v}, v{v}, v{t}")
        a(f"v_mov_b32 v{t}, v{v}"); a(f"v_permlane32_swap_b32 v{v}, v{t}"); a(f"v_add_f32 v{v}, v{v}, v{t}")
    def rbf(self, v):
        a = self.a
        a(f"v_cvt_pk_bf16_f32 v{v}, v{v}, v{v}"); a(f"v_lshlrev_b32 v{v}, 16, v{v}")

    def c_start(self):
        a = self.a
        srd(a, SRD_A, sX, 4 << 20)
        vo = 2
        a(f"v_and_b32 v3, 3, v{vLane}"); a(f"v_bfe_u32 v4, v{vLane}, 2, 1"); a(f"v_lshrrev_b32 v5, 3, v{vLane}")
        a("v_lshlrev_b32 v6, 4, v3"); a("v_lshlrev_b32 v7, 11, v4"); a("v_lshlrev_b32 v8, 6, v5")
        a(f"v_add3_u32 v{vo}, v6, v7, v8")
        a(f"s_lshl_b32 s{sT}, s{sRb1}, 7"); a(f"s_lshl_b32 s{sT+1}, s{sJ}, 3"); a(f"s_add_u32 s{sT}, s{sT}, s{sT+1}")
        a(f"s_lshl_b32 s{sT+1}, s{sLw}, 1"); a(f"s_add_u32 s{sT}, s{sT}, s{sT+1}"); a(f"s_lshl_b32 s{sT}, s{sT}, 11")
        for t in range(4):
            a(f"buffer_load_dwordx4 v[{16+4*t}:{19+4*t}], v{vo}, s[{SRD_A}:{SRD_A+3}], s{sT} offen offset:{512*t}")
        srd(a, SRD_B, sK, 4 << 20); srd(a, SRD_C, sV, 4 << 20); srd(a, SRD_D, sSK, 8192)
        a(f"v_and_b32 v9, 7, v{vLane}"); a(f"v_lshrrev_b32 v10, 3, v{vLane}")
        a(f"s_lshl_b32 s{sT+1}, s{sLw}, 3"); a(f"v_add_u32 v10, s{sT+1}, v10")
        a("v_lshlrev_b32 v11, 13, v10")
        a("v_lshlrev_b32 v12, 4, v9"); a("v_add_u32 v11, v11, v12")
        a(f"s_lshl_b32 s{sT+1}, s{sRb1}, 18"); a(f"s_lshl_b32 s{sT+2}, s{sJ}, 7"); a(f"s_add_u32 s{sT+1}, s{sT+1}, s{sT+2}")
        a(f"s_sub_u32 s{sT+1}, s{sT+1}, {3*2048}")
        a(f"v_add_u32 v11, s{sT+1}, v11")
        for i in range(7):
            if i: a("v_add_u32 v11, 0x800, v11")
            a(f"buffer_load_dwordx4 v[{128+4*i}:{131+4*i}], v11, s[{SRD_B}:{SRD_B+3}], 0 offen")
            if i >= 3: a(f"buffer_load_dwordx4 v[{156+4*(i-3)}:{159+4*(i-3)}], v11, s[{SRD_C}:{SRD_C+3}], 0 offen")
        a("v_lshlrev_b32 v12, 6, v9"); a(f"s_lshl_b32 s{sT+1}, s{sJ}, 9")
        for i in range(4):
            a(f"buffer_load_dwordx4 v[{172+4*i}:{175+4*i}], v12, s[{SRD_D}:{SRD_D+3}], s{sT+1} offen offset:{16*i}")
        a("s_waitcnt vmcnt(15)")
        for i in range(16):
            a(f"v_lshlrev_b32 v{32+2*i}, 16, v{16+i}"); a(f"v_and_b32 v{33+2*i}, 0xffff0000, v{16+i}")
        a("v_pk_add_f32 v[64:65], v[32:33], v[34:35]"); a("v_pk_add_f32 v[66:67], v[36:37], v[38:39]")
        for i in range(4, 16, 2):
            a(f"v_pk_add_f32 v[64:65], v[64:65], v[{32+2*i}:{33+2*i}]"); a(f"v_pk_add_f32 v[66:67], v[66:67], v[{34+2*i}:{35+2*i}]")
        a("v_pk_add_f32 v[64:65], v[64:65], v[66:67]"); a("v_add_f32 v64, v64, v65")
        self.reduce64(64, 65)
        a("v_mul_f32 v64, 0x3a800000, v64")
        a("v_sub_f32 v66, 0, v64"); a("v_mov_b32 v67, v66")
        a("v_mov_b32 v68, 0"); a("v_mov_b32 v69, 0"); a("v_mov_b32 v70, 0"); a("v_mov_b32 v71, 0")
        for i in range(0, 16, 2):
            a(f"v_pk_add_f32 v[72:73], v[{32+2*i}:{33+2*i}], v[66:67]"); a(f"v_pk_add_f32 v[74:75], v[{34+2*i}:{35+2*i}], v[66:67]")
            a("v_pk_fma_f32 v[68:69], v[72:73], v[72:73], v[68:69]"); a("v_pk_fma_f32 v[70:71], v[74:75], v[74:75], v[70:71]")
        a("v_pk_add_f32 v[68:69], v[68:69], v[70:71]"); a("v_add_f32 v68, v68, v69")
        self.reduce64(68, 69)
        a("v_mul_f32 v68, 0x3a800000, v68")
        self.rbf(68)
        a("v_add_f32 v68, 0x3727c5ac, v68")
        self.rbf(68)
        a("v_sqrt_f32 v68, v68")
        self.rbf(68)
        a("v_rcp_f32 v68, v68")
        self.rbf(64)
        a("v_sub_f32 v66, 0, v64"); a("v_mov_b32 v67, v66"); a("v_mov_b32 v69, v68")
        for i in range(16):
            t = 72 + 2*(i % 2)
            a(f"v_pk_add_f32 v[{t}:{t+1}], v[{32+2*i}:{33+2*i}], v[66:67]")
            a(f"v_cvt_pk_bf16_f32 v{t}, v{t}, v{t+1}")
            a(f"v_and_b32 v{t+1}, 0xffff0000, v{t}"); a(f"v_lshlrev_b32 v{t}, 16, v{t}")
            a(f"v_pk_mul_f32 v[{t}:{t+1}], v[{t}:{t+1}], v[68:69]")
            a(f"v_cvt_pk_bf16_f32 v{16+i}, v{t}, v{t+1}")
        a(f"s_lshl_b32 s{sT}, s{sJ}, 1"); a(f"s_lshr_b32 s{sT+1}, s{sLw}, 1"); a(f"s_add_u32 s{sT}, s{sT}, s{sT+1}")
        a(f"s_sub_u32 s{sT}, 0, s{sT}"); a(f"s_and_b32 s{sT}, s{sT}, 3")
        a(f"v_xor_b32 v3, s{sT}, v3"); a("v_lshlrev_b32 v3, 4, v3"); a("v_lshlrev_b32 v4, 6, v4"); a("v_lshlrev_b32 v5, 13, v5")
        a("v_add3_u32 v2, v3, v4, v5")
        a(f"s_lshl_b32 s{sT}, s{sRb1}, 18"); a(f"s_lshl_b32 s{sT+1}, s{sJ}, 9"); a(f"s_add_u32 s{sT}, s{sT}, s{sT+1}")
        a(f"s_lshl_b32 s{sT+1}, s{sLw}, 7"); a(f"s_add_u32 s{sT}, s{sT}, s{sT+1}")
        if XN_OFF: a(f"s_add_u32 s{sT}, s{sT}, {XN_OFF}")
        for t in range(4):
            a(f"buffer_store_dwordx4 v[{16+4*t}:{19+4*t}], v2, s[{SRD_WS}:{SRD_WS+3}], s{sT} offen sc1")
            if t < 3: a(f"s_add_u32 s{sT}, s{sT}, 65536")
        a("s_waitcnt vmcnt(0)")
        self.stamp(1)
        a("s_barrier")
        if self.done_after("ln"): a("s_branch L_exit"); return
        for dd in range(4):
            b = 172 + 4*dd
            for half, (s0, s1) in enumerate(((b, b+1), (b+2, b+3))):
                a(f"v_lshlrev_b32 v{188+0*8+2*dd+half}, 16, v{s0}"); a(f"v_and_b32 v{188+1*8+2*dd+half}, 0xffff0000, v{s0}")
                a(f"v_lshlrev_b32 v{188+2*8+2*dd+half}, 16, v{s1}"); a(f"v_and_b32 v{188+3*8+2*dd+half}, 0xffff0000, v{s1}")
        a("v_sub_u32 v12, 31, v10"); a("v_lshrrev_b32 v13, 1, v12"); a("v_xor_b32 v13, v13, v9"); a("v_lshlrev_b32 v13, 4, v13")
        a("v_and_b32 v12, 1, v12"); a("v_lshlrev_b32 v12, 3, v12"); a("v_lshlrev_b32 v14, 11, v9")
        a("v_add3_u32 v12, v12, v13, v14"); a(f"v_add_u32 v12, {UTILE}, v12")
        for dd in range(4):
            for i in range(7):
                a(f"v_lshlrev_b32 v{32+2*i}, 16, v{128+4*i+dd}"); a(f"v_and_b32 v{33+2*i}, 0xffff0000, v{128+4*i+dd}")
            for i in range(4):
                a(f"v_lshlrev_b32 v{46+2*i}, 16, v{156+4*i+dd}"); a(f"v_and_b32 v{47+2*i}, 0xffff0000, v{156+4*i+dd}")
            W = lambda jj: f"v[{188+8*jj+2*dd}:{189+8*jj+2*dd}]"
            K = lambda i: f"v[{32+2*i}:{33+2*i}]"
            for r in range(4):
                U = f"v[{54+2*r}:{55+2*r}]"
                a(f"v_pk_mul_f32 {U}, {K(r+3)}, {W(0)}")
            for jj in range(1, 4):
                for r in range(4):
                    U = f"v[{54+2*r}:{55+2*r}]"
                    a(f"v_pk_fma_f32 {U}, {K(r+3-jj)}, {W(jj)}, {U}")
            for r in range(4):
                U = f"v[{54+2*r}:{55+2*r}]"
                a(f"v_pk_mul_f32 {U}, {U}, v[{46+2*r}:{47+2*r}]")
            for half in range(2):
                e = 2*dd + half; o = 62 + 2*half
                a(f"v_cvt_pk_bf16_f32 v{o}, v{54+6+half}, v{54+4+half}")
                a(f"v_cvt_pk_bf16_f32 v{o+1}, v{54+2+half}, v{54+0+half}")
                a(f"ds_write_b64 v12, v[{o}:{o+1}] offset:{256*e}")
        a("s_waitcnt lgkmcnt(0)")
        a("s_barrier")
        a(f"v_and_b32 v9, 15, v{vLane}"); a(f"v_lshrrev_b32 v10, 4, v{vLane}")
        a(f"s_lshl_b32 s{sT}, s{sLw}, 12"); a(f"s_add_u32 s{sT}, s{sT}, {UTILE}")
        a(f"v_lshlrev_b32 v11, 8, v10"); a(f"v_add_u32 v11, s{sT}, v11")
        for i in range(4):
            a(f"s_lshl_b32 s{sT+1}, s{sLw}, 1"); a(f"s_add_u32 s{sT+1}, s{sT+1}, {i>>1}")
            a(f"v_xor_b32 v12, s{sT+1}, v9"); a("v_lshlrev_b32 v12, 4, v12"); a("v_add_u32 v12, v11, v12")
            a(f"ds_read_b128 v[{16+4*i}:{19+4*i}], v12 offset:{1024*i}")
        a("v_lshlrev_b32 v10, 12, v10"); a("v_lshlrev_b32 v9, 4, v9"); a("v_add_u32 v10, v10, v9")
        a(f"s_lshl_b32 s{sT}, s{sJ}, 18"); a(f"s_lshl_b32 s{sT+1}, s{sLw}, 16"); a(f"s_add_u32 s{sT}, s{sT}, s{sT+1}")
        a(f"s_lshl_b32 s{sT+1}, s{sRb1}, 8"); a(f"s_sub_u32 s{sT}, s{sT}, s{sT+1}"); a(f"s_add_u32 s{sT}, s{sT}, {UT_OFF+3840}")
        for i in range(4):
            a(f"s_waitcnt lgkmcnt({3-i})")
            a(f"buffer_store_dwordx4 v[{16+4*i}:{19+4*i}], v10, s[{SRD_WS}:{SRD_WS+3}], s{sT} offen sc1")
            if i < 3: a(f"s_add_u32 s{sT}, s{sT}, 16384")
        if self.done_after("u"):
            a("s_waitcnt vmcnt(0)"); a("s_barrier"); a("s_branch L_exit"); return

    def c_gemm1(self):
        a = self.a
        vXb, vW0b, vW1b, vWsb = 10, 11, 12, 13
        vX, vW0, vW1, vWs = 104, 105, 106, 107
        vT = 108
        WF = [16, 60]; XF = [44, 88]; ACC = 112
        acc = lambda ft, st: ACC + 4*(ft*4 + st)
        n, kq = vT, vT+1
        a(f"v_and_b32 v{n}, 15, v{vLane}"); a(f"v_lshrrev_b32 v{kq}, 4, v{vLane}")
        a(f"v_lshrrev_b32 v{vT+2}, 2, v{n}"); a(f"v_sub_u32 v{vT+2}, 0, v{vT+2}"); a(f"v_and_b32 v{vT+2}, 3, v{vT+2}")
        a(f"v_xor_b32 v{vT+2}, v{vT+2}, v{kq}"); a(f"v_lshlrev_b32 v{vT+2}, 4, v{vT+2}")
        a(f"v_lshlrev_b32 v{vT+3}, 6, v{n}"); a(f"v_add_u32 v{vXb}, v{vT+2}, v{vT+3}")
        a(f"s_lshl_b32 s{sT}, s{sWs_}, 12"); a(f"v_add_u32 v{vXb}, s{sT}, v{vXb}")
        a(f"v_lshrrev_b32 v{vT+2}, 2, v{n}")
        a(f"v_lshlrev_b32 v{vT+3}, 3, v{kq}"); a(f"v_add_u32 v{vT+2}, v{vT+2}, v{vT+3}")
        a(f"v_mul_u32_u24 v{vT+2}, 448, v{vT+2}")
        a(f"v_and_b32 v{vT+3}, 3, v{n}"); a(f"v_lshlrev_b32 v{vT+3}, 3, v{vT+3}")
        a(f"v_add_u32 v{vT+2}, v{vT+2}, v{vT+3}"); a(f"v_add_u32 v{vT+2}, {B1OFF}, v{vT+2}")
        a(f"v_and_b32 v{vT+3}, 1, v{kq}"); a(f"v_lshlrev_b32 v{vT+3}, 5, v{vT+3}")
        a(f"s_lshl_b32 s{sT}, s{sWf}, 8")
        a(f"v_add_u32 v{vW0b}, v{vT+2}, v{vT+3}"); a(f"v_add_u32 v{vW0b}, s{sT}, v{vW0b}")
        a(f"v_sub_u32 v{vW1b}, v{vT+2}, v{vT+3}"); a(f"v_add_u32 v{vW1b}, s{sT}, v{vW1b}")
        a(f"v_add_u32 v{vWsb}, v{vT+2}, v{vT+3}"); a(f"v_add_u32 v{vWsb}, 192, v{vWsb}")
        a(f"v_sub_u32 v{vT+2}, v{vT+2}, v{vT+3}"); a(f"v_add_u32 v{vT+2}, 224, v{vT+2}")
        a(f"s_cmp_eq_u32 s{sWf}, 1"); a("s_cselect_b64 vcc, -1, 0")
        a(f"v_cndmask_b32 v{vWsb}, v{vWsb}, v{vT+2}, vcc")
        for i in range(112): a(f"v_mov_b32 v{ACC+i}, 0")
        a(f"v_mov_b32 v{vX}, v{vXb}"); a(f"v_mov_b32 v{vW0}, v{vW0b}"); a(f"v_mov_b32 v{vW1}, v{vW1b}"); a(f"v_mov_b32 v{vWs}, v{vWsb}")
        a(f"s_mov_b32 s{sSlotR}, 0")
        def reads(setn, t):
            W, X = WF[setn], XF[setn]
            def wr(ft, hh):
                base = vWs if ft == 6 else (vW0 if ft % 2 == 0 else vW1)
                imm = (0 if ft == 6 else 32*ft) + (32*t + 4*hh)*448
                return [f"ds_read_b64_tr_b16 v[{W+4*ft+2*hh}:{W+4*ft+2*hh+1}], v{base} offset:{imm}"]
            def xr(st): return [f"ds_read_b128 v[{X+4*st}:{X+4*st+3}], v{vX} offset:{t*8192+st*1024}"]
            r = [xr(0), wr(0,0), wr(0,1), xr(1), xr(2), xr(3)]
            for ft in range(1, 7): r += [wr(ft,0), wr(ft,1)]
            return r
        def mfmas(setn):
            W, X = WF[setn], XF[setn]
            return [f"v_mfma_f32_16x16x32_bf16 v[{acc(ft,st)}:{acc(ft,st)+3}], v[{W+4*ft}:{W+4*ft+3}], v[{X+4*st}:{X+4*st+3}], v[{acc(ft,st)}:{acc(ft,st)+3}]"
                    for ft in range(7) for st in range(4)]
        upd = [f"s_add_u32 s{sSlotR}, s{sSlotR}, {SLOT1}", f"s_cmp_eq_u32 s{sSlotR}, {3*SLOT1}", f"s_cselect_b32 s{sSlotR}, 0, s{sSlotR}",
               f"v_add_u32 v{vX}, s{sSlotR}, v{vXb}", f"v_add_u32 v{vW0}, s{sSlotR}, v{vW0b}",
               f"v_add_u32 v{vW1}, s{sSlotR}, v{vW1b}", f"v_add_u32 v{vWs}, s{sSlotR}, v{vWsb}"]
        a("s_barrier")
        self.stamp(2)
        for g in reads(0, 0):
            for l in g: a(l)
        a("s_waitcnt lgkmcnt(0)")
        def iteration(last):
            slots = {i: g for i, g in enumerate(reads(1, 1))}
            for l in place(mfmas(0), slots): a(l)
            a("s_waitcnt vmcnt(0) lgkmcnt(0)")
            a("s_barrier")
            slots = {}
            if not last:
                slots = {i: list(g) for i, g in enumerate(reads(0, 0))}
                slots[-1] = upd
            for l in place(mfmas(1), slots): a(l)
            a("s_waitcnt lgkmcnt(0)")
        a(f"s_mov_b32 s{sIt}, 15")
        a(".p2align 6")
        a.label("L_g1")
        iteration(False)
        a(f"s_sub_u32 s{sIt}, s{sIt}, 1"); a(f"s_cmp_lg_u32 s{sIt}, 0"); a("s_cbranch_scc1 L_g1")
        iteration(True)
        self.stamp(3)
        a(f"s_lshl_b32 s{sT}, s{sWf}, 15"); a(f"v_add_u32 v{vX}, s{sT}, v{vXb}")
        for p in range(3):
            for st in range(4):
                r = 16 + 4*((p*4 + st) % 8)
                for h in range(2):
                    A = acc(2*p+h, st)
                    for k in range(4): a(f"v_max_f32 v{A+k}, 0, v{A+k}")
                    a(f"v_cvt_pk_bf16_f32 v{r+2*h}, v{A}, v{A+1}")
                    a(f"v_cvt_pk_bf16_f32 v{r+2*h+1}, v{A+2}, v{A+3}")
                a(f"ds_write_b128 v{vX}, v[{r}:{r+3}] offset:{p*8192+st*1024}")
        a(f"s_lshl_b32 s{sT}, s{sWf}, 3"); a(f"s_add_u32 s{sT}, s{sT}, {3*8192}"); a(f"v_add_u32 v{vX}, s{sT}, v{vXb}")
        for st in range(4):
            r = 60 + 2*st
            A = acc(6, st)
            for k in range(4): a(f"v_max_f32 v{A+k}, 0, v{A+k}")
            a(f"v_cvt_pk_bf16_f32 v{r}, v{A}, v{A+1}"); a(f"v_cvt_pk_bf16_f32 v{r+1}, v{A+2}, v{A+3}")
            a(f"ds_write_b64 v{vX}, v[{r}:{r+1}] offset:{st*1024}")
        a("s_waitcnt lgkmcnt(0)")
        a("s_barrier")

    def c_conv(self):
        a = self.a
        F = [16, 144]; G = [48, 176]; ACC = 112
        vF, vG, vU = 104, 105, 106
        vT = 108
        n, kq = vT, vT+1
        a(f"v_and_b32 v{n}, 15, v{vLane}"); a(f"v_lshrrev_b32 v{kq}, 4, v{vLane}")
        a(f"v_add_u32 v{vT+2}, 1, v{n}"); a(f"v_and_b32 v{vT+3}, 3, v{vT+2}"); a(f"v_mul_u32_u24 v{vT+3}, {FCP}, v{vT+3}")
        a(f"v_and_b32 v{vT+2}, 28, v{vT+2}"); a(f"v_lshlrev_b32 v{vF}, 3, v{kq}"); a(f"v_add_u32 v{vT+2}, v{vT+2}, v{vF}")
        a(f"v_lshlrev_b32 v{vT+2}, 1, v{vT+2}"); a(f"v_add_u32 v{vF}, v{vT+2}, v{vT+3}")
        a(f"s_mul_i32 s{sT}, s{sLw}, {FCH}"); a(f"s_add_u32 s{sT}, s{sT}, {FBASE}"); a(f"v_add_u32 v{vF}, s{sT}, v{vF}")
        a(f"v_lshlrev_b32 v{vT+2}, 5, v{n}"); a(f"v_lshlrev_b32 v{vT+3}, 4, v{kq}"); a(f"v_sub_u32 v{vG}, v{vT+3}, v{vT+2}")
        a(f"s_mul_i32 s{sT}, s{sLw}, {URCH}"); a(f"s_add_u32 s{sT+1}, s{sT}, {URBASE+4064-3584}"); a(f"v_add_u32 v{vG}, s{sT+1}, v{vG}")
        a(f"v_lshlrev_b32 v{vT+3}, 3, v{kq}"); a(f"v_add_u32 v{vT+2}, v{vT+2}, v{vT+3}")
        a(f"s_add_u32 s{sT+1}, s{sT}, {URBASE+4088-3584}"); a(f"v_sub_u32 v{vU}, s{sT+1}, v{vT+2}")
        a(f"s_lshl_b32 s{sT+2}, s2, 2"); a(f"s_add_u32 s{sT+2}, s{sT+2}, s{sLw}")
        a(f"s_lshr_b32 s{sT+3}, s{sT+2}, 1"); a(f"s_lshl_b32 s{sT+3}, s{sT+3}, 2")
        a(f"s_load_dword s{sT+4}, s[{sD}:{sD+1}], s{sT+3}")
        for i in range(32): a(f"v_mov_b32 v{ACC+i}, 0")
        def reads(setn, ii):
            r = []
            fq = lambda q, hh: [f"ds_read_b64 v[{F[setn]+4*q+2*hh}:{F[setn]+4*q+2*hh+1}], v{vF} offset:{512*q+64*ii+8*hh}"]
            ge = lambda e: [f"ds_read_b128 v[{G[setn]+4*e}:{G[setn]+4*e+3}], v{vG} offset:{3584-512*e+64*ii}"]
            r += [fq(0,0), fq(0,1)] + [ge(e) for e in range(8)]
            for q in range(1, 8): r += [fq(q,0), fq(q,1)]
            return r
        def mfmas(setn):
            o = []
            for q in range(8):
                for e in range(8-q):
                    c = ACC + 4*(q+e)
                    o.append(f"v_mfma_f32_16x16x32_bf16 v[{c}:{c+3}], v[{F[setn]+4*q}:{F[setn]+4*q+3}], v[{G[setn]+4*e}:{G[setn]+4*e+3}], v[{c}:{c+3}]")
            return o
        for g in reads(0, 0):
            for l in g: a(l)
        a("s_waitcnt lgkmcnt(0)")
        a(f"s_and_b32 s{sT+2}, s{sT+2}, 1"); a(f"s_lshl_b32 s{sT+2}, s{sT+2}, 4"); a(f"s_lshr_b32 s{sT+4}, s{sT+4}, s{sT+2}"); a(f"s_lshl_b32 s{sT+4}, s{sT+4}, 16")
        a(f"s_mov_b32 s{sIt}, 4")
        a(".p2align 6")
        a.label("L_conv")
        for l in place(mfmas(0), {i: g for i, g in enumerate(reads(1, 1))}): a(l)
        a("s_waitcnt lgkmcnt(0)")
        sl = {i: list(g) for i, g in enumerate(reads(0, 2))}
        sl.setdefault(30, []).extend([f"v_add_u32 v{vF}, 128, v{vF}", f"v_add_u32 v{vG}, 128, v{vG}"])
        for l in place(mfmas(1), sl): a(l)
        a("s_waitcnt lgkmcnt(0)")
        a(f"s_sub_u32 s{sIt}, s{sIt}, 1"); a(f"s_cmp_lg_u32 s{sIt}, 0"); a("s_cbranch_scc1 L_conv")
        self.stamp(4)
        for c in range(8): a(f"ds_read_b64 v[{16+2*c}:{17+2*c}], v{vU} offset:{3584-512*c}")
        a(f"v_and_b32 v{vT+2}, 1, v{kq}"); a(f"v_lshlrev_b32 v{vT+2}, 9, v{vT+2}"); a(f"v_lshrrev_b32 v{vT+3}, 1, v{kq}"); a(f"v_lshlrev_b32 v{vT+3}, 4, v{vT+3}")
        a(f"v_lshlrev_b32 v{vF}, 5, v{n}"); a(f"v_add3_u32 v{vF}, v{vF}, v{vT+2}, v{vT+3}")
        a(f"s_lshl_b32 s{sT}, s2, 2"); a(f"s_add_u32 s{sT}, s{sT}, s{sLw}"); a(f"s_lshl_b32 s{sT}, s{sT}, 12"); a(f"s_add_u32 s{sT}, s{sT}, {YT_OFF}")
        a("s_waitcnt lgkmcnt(0)")
        for pr in range(4):
            o = 48 + 4*pr
            for h in range(2):
                c = 2*pr + h; A = ACC + 4*c; d0, d1 = 16+2*c, 17+2*c
                a(f"v_and_b32 v32, 0xffff0000, v{d1}"); a(f"v_lshlrev_b32 v33, 16, v{d1}")
                a(f"v_and_b32 v34, 0xffff0000, v{d0}"); a(f"v_lshlrev_b32 v35, 16, v{d0}")
                for r in range(4): a(f"v_fmac_f32 v{A+r}, s{sT+4}, v{32+r}")
                a(f"v_cvt_pk_bf16_f32 v{o+2*h}, v{A}, v{A+1}"); a(f"v_cvt_pk_bf16_f32 v{o+2*h+1}, v{A+2}, v{A+3}")
            a(f"v_permlane16_swap_b32 v{o}, v{o+2}"); a(f"v_permlane16_swap_b32 v{o+1}, v{o+3}")
            a(f"buffer_store_dwordx4 v[{o}:{o+3}], v{vF}, s[{SRD_WS}:{SRD_WS+3}], s{sT} offen offset:{1024*pr} sc1")
        if self.done_after("conv"):
            a("s_waitcnt vmcnt(0)"); a("s_barrier"); a("s_branch L_exit"); return

    def c_gemm2(self):
        a = self.a
        vXb = 10; vWb = [11, 12, 13, 14]
        vX = 104; vW = [105, 106, 107, 108]
        vT = 224
        WF = [16, 60]; XF = [44, 88]; ACC = 112
        acc = lambda dt, st: ACC + 4*(dt*4 + st)
        n, kq = vT, vT+1
        a(f"v_and_b32 v{n}, 15, v{vLane}"); a(f"v_lshrrev_b32 v{kq}, 4, v{vLane}")
        a(f"v_lshrrev_b32 v{vT+2}, 2, v{n}"); a(f"v_sub_u32 v{vT+2}, 0, v{vT+2}"); a(f"v_and_b32 v{vT+2}, 3, v{vT+2}")
        a(f"v_xor_b32 v{vT+2}, v{vT+2}, v{kq}"); a(f"v_lshlrev_b32 v{vT+2}, 4, v{vT+2}")
        a(f"v_lshlrev_b32 v{vT+3}, 6, v{n}"); a(f"v_add_u32 v{vXb}, v{vT+2}, v{vT+3}")
        a(f"s_lshl_b32 s{sT}, s{sWs_}, 12"); a(f"v_add_u32 v{vXb}, s{sT}, v{vXb}")
        a(f"v_lshrrev_b32 v{vT+2}, 2, v{n}")
        a(f"v_lshlrev_b32 v{vT+3}, 2, v{kq}"); a(f"v_add_u32 v{vT+2}, v{vT+2}, v{vT+3}")
        a(f"v_and_b32 v{vT+4}, 7, v{vT+2}"); a(f"v_lshlrev_b32 v{vT+4}, 1, v{vT+4}")
        a(f"v_lshlrev_b32 v{vT+2}, 8, v{vT+2}"); a(f"v_add_u32 v{vT+2}, {B2OFF}, v{vT+2}")
        a(f"v_and_b32 v{vT+3}, 1, v{n}"); a(f"v_lshlrev_b32 v{vT+3}, 3, v{vT+3}"); a(f"v_add_u32 v{vT+2}, v{vT+2}, v{vT+3}")
        a(f"v_bfe_u32 v{vT+3}, v{n}, 1, 1")
        for dt in range(4):
            a(f"s_lshl_b32 s{sT}, s{sKh}, 1"); a(f"s_add_u32 s{sT}, s{sT}, {dt}"); a(f"s_and_b32 s{sT}, s{sT}, 3"); a(f"s_lshl_b32 s{sT}, s{sT}, 1")
            a(f"s_lshl_b32 s{sT+1}, s{sWf}, 3"); a(f"s_add_u32 s{sT}, s{sT}, s{sT+1}")
            a(f"v_add_u32 v{vT+5}, s{sT}, v{vT+3}"); a(f"v_xor_b32 v{vT+5}, v{vT+5}, v{vT+4}"); a(f"v_lshlrev_b32 v{vT+5}, 4, v{vT+5}")
            a(f"v_add_u32 v{vWb[dt]}, v{vT+2}, v{vT+5}")
        for i in range(64): a(f"v_mov_b32 v{ACC+i}, 0")
        a(f"v_mov_b32 v{vX}, v{vXb}")
        for dt in range(4): a(f"v_mov_b32 v{vW[dt]}, v{vWb[dt]}")
        a(f"s_mov_b32 s{sSlotR}, 0")
        def reads(setn, t):
            W, X = WF[setn], XF[setn]
            wr = lambda dt, hh: [f"ds_read_b64_tr_b16 v[{W+4*dt+2*hh}:{W+4*dt+2*hh+1}], v{vW[dt]} offset:{(32*t+16*hh)*256}"]
            xr = lambda st: [f"ds_read_b128 v[{X+4*st}:{X+4*st+3}], v{vX} offset:{t*8192+st*1024}"]
            r = [xr(0), wr(0,0), wr(0,1), xr(1), xr(2), xr(3)]
            for dt in range(1, 4): r += [wr(dt,0), wr(dt,1)]
            return r
        def mfmas(setn):
            W, X = WF[setn], XF[setn]
            return [f"v_mfma_f32_16x16x32_bf16 v[{acc(dt,st)}:{acc(dt,st)+3}], v[{W+4*dt}:{W+4*dt+3}], v[{X+4*st}:{X+4*st+3}], v[{acc(dt,st)}:{acc(dt,st)+3}]"
                    for dt in range(4) for st in range(4)]
        upd = [f"s_add_u32 s{sSlotR}, s{sSlotR}, {SLOT2}", f"s_and_b32 s{sSlotR}, s{sSlotR}, {4*SLOT2-1}",
               f"v_add_u32 v{vX}, s{sSlotR}, v{vXb}"] + [f"v_add_u32 v{vW[dt]}, s{sSlotR}, v{vWb[dt]}" for dt in range(4)]
        a("s_barrier")
        self.stamp(5)
        for g in reads(0, 0):
            for l in g: a(l)
        a("s_waitcnt lgkmcnt(0)")
        def iteration(last):
            for l in place(mfmas(0), {i: g for i, g in enumerate(reads(1, 1))}): a(l)
            a("s_waitcnt vmcnt(0) lgkmcnt(0)")
            a("s_barrier")
            slots = {}
            if not last:
                slots = {i: list(g) for i, g in enumerate(reads(0, 0))}
                slots[-1] = upd
            for l in place(mfmas(1), slots): a(l)
            a("s_waitcnt lgkmcnt(0)")
        a(f"s_mov_b32 s{sIt}, 27")
        a(".p2align 6")
        a.label("L_g2")
        iteration(False)
        a(f"s_sub_u32 s{sIt}, s{sIt}, 1"); a(f"s_cmp_lg_u32 s{sIt}, 0"); a("s_cbranch_scc1 L_g2")
        iteration(True)
        self.stamp(6)
        a(f"v_lshlrev_b32 v16, 4, v{vLane}")
        a(f"s_lshl_b32 s{sT}, s2, 15"); a(f"s_lshl_b32 s{sT+1}, s{sLw}, 13"); a(f"s_add_u32 s{sT}, s{sT}, s{sT+1}"); a(f"s_add_u32 s{sT}, s{sT}, {PX_OFF}")
        a(f"s_add_u32 s{sT+2}, s{sT}, 4096")
        a("s_nop 4")
        for i in range(8):
            so = sT if i < 4 else sT+2
            a(f"buffer_store_dwordx4 v[{ACC+32+4*i}:{ACC+35+4*i}], v16, s[{SRD_WS}:{SRD_WS+3}], s{so} offen offset:{1024*(i%4)} sc1")
        a("s_waitcnt vmcnt(0)")
        a("s_barrier")
        dq = kq
        vA0, vA1, vY = 48, 49, 50
        a(f"v_lshrrev_b32 v{vT+2}, 2, v{n}"); a(f"v_sub_u32 v{vT+2}, 0, v{vT+2}"); a(f"v_and_b32 v{vT+2}, 3, v{vT+2}")
        a(f"v_lshrrev_b32 v{vT+3}, 1, v{dq}")
        a(f"v_lshlrev_b32 v{vT+4}, 6, v{n}"); a(f"v_and_b32 v{vT+5}, 1, v{dq}"); a(f"v_lshlrev_b32 v{vT+5}, 3, v{vT+5}"); a(f"v_add_u32 v{vT+4}, v{vT+4}, v{vT+5}")
        a(f"s_lshl_b32 s{sT}, s{sWf}, 13"); a(f"s_lshl_b32 s{sT+1}, s{sWs_}, 12"); a(f"s_add_u32 s{sT}, s{sT}, s{sT+1}"); a(f"s_add_u32 s{sT}, s{sT}, {XT}")
        a(f"v_add_u32 v{vT+4}, s{sT}, v{vT+4}")
        a(f"v_xor_b32 v{vA0}, v{vT+3}, v{vT+2}"); a(f"v_lshlrev_b32 v{vA0}, 4, v{vA0}"); a(f"v_add_u32 v{vA0}, v{vA0}, v{vT+4}")
        a(f"v_add_u32 v{vT+3}, 2, v{vT+3}"); a(f"v_xor_b32 v{vA1}, v{vT+3}, v{vT+2}"); a(f"v_lshlrev_b32 v{vA1}, 4, v{vA1}"); a(f"v_add_u32 v{vA1}, v{vA1}, v{vT+4}")
        a(f"v_lshrrev_b32 v{vT+2}, 2, v{n}"); a(f"v_lshlrev_b32 v{vT+3}, 2, v{dq}"); a(f"v_add_u32 v{vT+2}, v{vT+2}, v{vT+3}")
        a(f"v_and_b32 v{vT+3}, 7, v{vT+2}"); a(f"v_lshlrev_b32 v{vT+3}, 1, v{vT+3}")
        a(f"v_lshlrev_b32 v{vT+2}, 8, v{vT+2}"); a(f"v_and_b32 v{vT+4}, 1, v{n}"); a(f"v_lshlrev_b32 v{vT+4}, 3, v{vT+4}"); a(f"v_add_u32 v{vT+2}, v{vT+2}, v{vT+4}")
        a(f"s_lshl_b32 s{sT}, s{sWf}, 13"); a(f"s_add_u32 s{sT}, s{sT}, {YTL}"); a(f"v_add_u32 v{vT+2}, s{sT}, v{vT+2}")
        a(f"v_bfe_u32 v{vT+4}, v{n}, 1, 1"); a(f"s_lshl_b32 s{sT}, s{sWs_}, 3"); a(f"v_add_u32 v{vT+4}, s{sT}, v{vT+4}")
        for st in range(4):
            a(f"v_add_u32 v{vT+5}, {2*st}, v{vT+4}"); a(f"v_xor_b32 v{vT+5}, v{vT+5}, v{vT+3}"); a(f"v_lshlrev_b32 v{vT+5}, 4, v{vT+5}")
            a(f"v_add_u32 v{vY+st}, v{vT+5}, v{vT+2}")
        for dt in range(2):
            for st in range(4):
                r = 56 + 6*((dt*4+st) % 4)
                va = vA0 if dt == 0 else vA1
                a(f"ds_read_b64 v[{r}:{r+1}], v{va} offset:{st*1024}")
                a(f"ds_read_b64 v[{r+2}:{r+3}], v{va} offset:{st*1024+16384}")
                a(f"ds_read_b64_tr_b16 v[{r+4}:{r+5}], v{vY+st} offset:{dt*4096}")
                a("s_waitcnt lgkmcnt(0)")
                B = 16 + 16*dt + 4*st
                for hh in range(2):
                    a(f"v_lshlrev_b32 v80, 16, v{r+hh}"); a(f"v_and_b32 v81, 0xffff0000, v{r+hh}")
                    a(f"v_lshlrev_b32 v82, 16, v{r+2+hh}"); a(f"v_and_b32 v83, 0xffff0000, v{r+2+hh}")
                    a(f"v_lshlrev_b32 v84, 16, v{r+4+hh}"); a(f"v_and_b32 v85, 0xffff0000, v{r+4+hh}")
                    a(f"v_fma_f32 v{B+2*hh}, v82, v84, v80"); a(f"v_fma_f32 v{B+2*hh+1}, v83, v85, v81")
        a("s_barrier")
        self.stamp(7)
        a(f"v_lshlrev_b32 v60, 4, v{vLane}")
        a(f"s_xor_b32 s{sT}, s2, 128"); a(f"s_lshl_b32 s{sT}, s{sT}, 15"); a(f"s_lshl_b32 s{sT+1}, s{sLw}, 13"); a(f"s_add_u32 s{sT}, s{sT}, s{sT+1}"); a(f"s_add_u32 s{sT}, s{sT}, {PX_OFF}")
        a(f"s_add_u32 s{sT+2}, s{sT}, 4096")
        for i in range(8):
            so = sT if i < 4 else sT+2
            a(f"buffer_load_dwordx4 v[{64+4*i}:{67+4*i}], v60, s[{SRD_WS}:{SRD_WS+3}], s{so} offen offset:{1024*(i%4)}")
        srd(a, SRD_A, sOUT, 4 << 20)
        a(f"v_and_b32 v{vT+2}, 1, v{kq}"); a(f"v_lshlrev_b32 v{vT+2}, 5, v{vT+2}"); a(f"v_lshrrev_b32 v{vT+3}, 1, v{kq}"); a(f"v_lshlrev_b32 v{vT+3}, 4, v{vT+3}")
        a(f"v_lshlrev_b32 v61, 11, v{n}"); a(f"v_add3_u32 v61, v61, v{vT+2}, v{vT+3}")
        a(f"s_lshl_b32 s{sT}, s{sRb2}, 18"); a(f"s_lshl_b32 s{sT+1}, s{sWs_}, 17"); a(f"s_add_u32 s{sT}, s{sT}, s{sT+1}")
        a(f"s_lshl_b32 s{sT+1}, s{sC}, 8"); a(f"s_add_u32 s{sT}, s{sT}, s{sT+1}"); a(f"s_lshl_b32 s{sT+1}, s{sWf}, 7"); a(f"s_add_u32 s{sT}, s{sT}, s{sT+1}")
        a(f"s_lshl_b32 s{sT+1}, s{sKh}, 6"); a(f"s_add_u32 s{sT}, s{sT}, s{sT+1}")
        for st in range(4):
            a(f"s_waitcnt vmcnt({3-st})") if False else None
        a("s_waitcnt vmcnt(0)")
        for st in range(4):
            o = 96 + 4*(st % 2)
            for dt in range(2):
                A = acc(dt, st); P = 64 + 16*dt + 4*st; B = 16 + 16*dt + 4*st
                for r in range(4):
                    a(f"v_add_f32 v{A+r}, v{A+r}, v{P+r}"); a(f"v_add_f32 v{A+r}, v{A+r}, v{B+r}")
                a(f"v_cvt_pk_bf16_f32 v{o+2*dt}, v{A}, v{A+1}"); a(f"v_cvt_pk_bf16_f32 v{o+2*dt+1}, v{A+2}, v{A+3}")
            a(f"v_permlane16_swap_b32 v{o}, v{o+2}"); a(f"v_permlane16_swap_b32 v{o+1}, v{o+3}")
            a(f"buffer_store_dwordx4 v[{o}:{o+3}], v61, s[{SRD_A}:{SRD_A+3}], s{sT} offen")
            if st < 3: a(f"s_add_u32 s{sT}, s{sT}, 32768")

    def role_c(self):
        a = self.a
        self.c_start()
        if self.done_after("u"): return
        self.c_gemm1()
        if self.done_after("g1"): a("s_barrier"); a("s_branch L_exit"); return
        self.c_conv()
        if self.done_after("conv"): return
        self.c_gemm2()
        self.dump_stamps()
        a("s_branch L_exit")

    def dump_stamps(self):
        a = self.a
        if not self.stamps: return
        a("s_waitcnt lgkmcnt(0)")
        for i in range(8): a(f"v_mov_b32 v{100+i}, s{sStamp+2*i}")
        a(f"s_lshl_b32 s{sT}, s2, 3"); a(f"s_add_u32 s{sT}, s{sT}, s{sWave}"); a(f"s_lshl_b32 s{sT}, s{sT}, 6"); a(f"s_add_u32 s{sT}, s{sT}, {ST_OFF}")
        a("v_mov_b32 v99, 0"); a("s_mov_b64 exec, 1")
        a(f"buffer_store_dwordx4 v[100:103], v99, s[{SRD_WS}:{SRD_WS+3}], s{sT} offen")
        a(f"buffer_store_dwordx4 v[104:107], v99, s[{SRD_WS}:{SRD_WS+3}], s{sT} offen offset:16")
        a("s_mov_b64 exec, -1")

    def role_l(self):
        a = self.a
        WS = f"s[{SRD_WS}:{SRD_WS+3}]"
        a.label("L_roleL")
        lw = sLw
        vB = 16
        vA = 30; vT = 32
        a(f"s_mul_i32 s{sT}, s{sJ}, 448")
        srd(a, SRD_A, sW1, 1024*7168, add=f"s{sT}")
        for ii in range(14):
            a(f"s_mul_i32 s{sT}, s{lw}, 896"); a(f"s_add_u32 s{sT}, s{sT}, {64*ii}")
            a(f"v_add_u32 v{vT}, s{sT}, v{vLane}")
            a(f"v_mul_u32_u24 v{vT+1}, 2341, v{vT}"); a(f"v_lshrrev_b32 v{vT+1}, 16, v{vT+1}")
            a(f"v_mul_u32_u24 v{vT+2}, 28, v{vT+1}"); a(f"v_sub_u32 v{vT+2}, v{vT}, v{vT+2}")
            a(f"v_bfe_u32 v{vT+3}, v{vT+1}, 3, 1"); a(f"v_lshlrev_b32 v{vT+3}, 1, v{vT+3}")
            a(f"v_xor_b32 v{vT+2}, v{vT+2}, v{vT+3}")
            a(f"v_mul_u32_u24 v{vT+1}, 7168, v{vT+1}"); a(f"v_lshlrev_b32 v{vT+2}, 4, v{vT+2}")
            a(f"v_add_u32 v{vB+ii}, v{vT+1}, v{vT+2}")
            if ii % 4: a(f"v_subrev_u32 v{vB+ii}, {1024*(ii%4)}, v{vB+ii}")
        a(f"v_lshlrev_b32 v{vA}, 4, v{vLane}")
        a(f"s_mul_i32 s{sM0B}, s{lw}, 14336"); a(f"s_add_u32 s{sM0B}, s{sM0B}, {B1OFF}")
        a(f"s_lshl_b32 s{sM0A}, s{lw}, 13")
        def dmaB(slot, kb):
            for ii in range(14):
                if ii == 0: a(f"s_add_u32 m0, {slot}, s{sM0B}")
                elif ii % 4 == 0: a("s_add_u32 m0, m0, 4096")
                off = f" offset:{1024*(ii%4)}" if ii % 4 else ""
                a(f"buffer_load_dwordx4 v{vB+ii}, s[{SRD_A}:{SRD_A+3}], {kb} offen{off} lds")
        def dmaA(slot, ka):
            for h in range(2):
                if h == 0: a(f"s_add_u32 m0, {slot}, s{sM0A}"); so = ka
                else:
                    a("s_add_u32 m0, m0, 4096"); a(f"s_add_u32 s{sT+1}, {ka}, 4096"); so = f"s{sT+1}"
                for k in range(4):
                    off = f" offset:{1024*k}" if k else ""
                    a(f"buffer_load_dwordx4 v{vA}, {WS}, {so} offen{off} lds")
        for s in range(3):
            a(f"s_mov_b32 s{sSlotW}, {s*SLOT1}"); a(f"s_mov_b32 s{sKB}, {s*64*7168}")
            dmaB(f"s{sSlotW}", f"s{sKB}")
        a("s_barrier")
        if self.done_after("ln"): a("s_branch L_exit"); return
        self.get_nonce(vT)
        a("s_barrier")
        if self.done_after("u"): a("s_barrier"); a("s_branch L_exit"); return
        a(f"s_lshl_b32 s{sT+2}, s{sRb1}, 7"); a(f"s_add_u32 s{sT+2}, s{sT+2}, {XNF}")
        poll(a, vT, f"s{sT+2}", 16, vT+2, "xn")
        a(f"s_lshl_b32 s{sKA}, s{sRb1}, 18"); a(f"s_lshl_b32 s{sT}, s{lw}, 13"); a(f"s_add_u32 s{sKA}, s{sKA}, s{sT}")
        if XN_OFF: a(f"s_add_u32 s{sKA}, s{sKA}, {XN_OFF}")
        for s in range(3):
            a(f"s_mov_b32 s{sSlotW}, {s*SLOT1}")
            dmaA(f"s{sSlotW}", f"s{sKA}")
            a(f"s_add_u32 s{sKA}, s{sKA}, 16384")
        a(f"s_mov_b32 s{sSlotW}, 0"); a(f"s_mov_b32 s{sKB}, {3*64*7168}")
        a("s_waitcnt vmcnt(16)")
        a("s_barrier")
        def stage1():
            dmaA(f"s{sSlotW}", f"s{sKA}"); dmaB(f"s{sSlotW}", f"s{sKB}")
            a(f"s_add_u32 s{sKA}, s{sKA}, 16384"); a(f"s_add_u32 s{sKB}, s{sKB}, {64*7168}")
            a(f"s_add_u32 s{sSlotW}, s{sSlotW}, {SLOT1}"); a(f"s_cmp_eq_u32 s{sSlotW}, {3*SLOT1}"); a(f"s_cselect_b32 s{sSlotW}, 0, s{sSlotW}")
        a("s_waitcnt vmcnt(8)"); a("s_barrier")
        stage1()
        a(f"s_mov_b32 s{sIt}, 12")
        a.label("L_l1")
        a("s_waitcnt vmcnt(22)"); a("s_barrier")
        stage1()
        a(f"s_sub_u32 s{sIt}, s{sIt}, 1"); a(f"s_cmp_lg_u32 s{sIt}, 0"); a("s_cbranch_scc1 L_l1")
        a("s_waitcnt vmcnt(22)"); a("s_barrier")
        a("s_waitcnt vmcnt(0)"); a("s_barrier")
        vF = 34
        for cp in range(4): a(f"v_add_u32 v{vF+cp}, {2*cp}, v{vA}")
        a(f"v_add_u32 v{vF+4}, 4096, v{vA}")
        for cc in range(2):
            a(f"s_lshl_b32 s{sT}, s2, 2"); a(f"s_lshl_b32 s{sT+1}, s{lw}, 1"); a(f"s_add_u32 s{sT+1}, s{sT+1}, {cc}"); a(f"s_add_u32 s{sT}, s{sT}, s{sT+1}")
            a(f"s_lshl_b32 s{sT}, s{sT}, 12")
            srd(a, SRD_B, sSSM, 4096, add=f"s{sT}", sub_size=False)
            a(f"s_add_u32 s{sT}, s{sT}, {UT_OFF}")
            srd(a, SRD_C, sWS, 4096, add=f"s{sT}", sub_size=False)
            a(f"s_mul_i32 s{sT+2}, s{sT+1}, {URCH}"); a(f"s_add_u32 m0, s{sT+2}, {URBASE}")
            for k in range(4):
                off = f" offset:{1024*k}" if k else ""
                a(f"buffer_load_dwordx4 v{vA}, s[{SRD_C}:{SRD_C+3}], 0 offen{off} lds")
            a("s_add_u32 m0, m0, 4096")
            a(f"buffer_load_dwordx4 v{vF+4}, s[{SRD_C}:{SRD_C+3}], 0 offen lds")
            a(f"s_mul_i32 s{sT+2}, s{sT+1}, {FCH}"); a(f"s_add_u32 s{sT+2}, s{sT+2}, {FBASE+32}")
            for cp in range(4):
                a(f"s_add_u32 m0, s{sT+2}, {cp*FCP}")
                for k in range(4):
                    off = f" offset:{1024*k}" if k else ""
                    a(f"buffer_load_dwordx4 v{vF+cp}, s[{SRD_B}:{SRD_B+3}], 0 offen{off} lds")
        a("s_barrier")
        a(f"v_bfe_u32 v{vT}, v{vLane}, 2, 1"); a(f"v_and_b32 v{vT+1}, 3, v{vLane}")
        a(f"s_lshl_b32 s{sT}, s{lw}, 1"); a(f"v_add_u32 v{vT}, s{sT}, v{vT}"); a(f"v_mul_u32_u24 v{vT}, {FCH}, v{vT}"); a(f"v_add_u32 v{vT}, {FBASE}, v{vT}")
        a(f"v_mul_u32_u24 v{vT+2}, {FCP}, v{vT+1}"); a(f"v_add_u32 v{vT+2}, v{vT+2}, v{vT}")
        a("s_waitcnt vmcnt(0)")
        a(f"ds_read_b64 v[{vT+4}:{vT+5}], v{vT} offset:32")
        for i in range(4): a(f"v_mov_b32 v{vT+8+i}, 0")
        a("s_waitcnt lgkmcnt(0)")
        d0, d1 = vT+4, vT+5
        a(f"v_lshlrev_b32 v{vT+6}, 16, v{d0}")
        a(f"v_alignbit_b32 v{vT+7}, v{d1}, v{d0}, 16")
        a(f"v_mov_b32 v{vT+12}, 0"); a(f"v_mov_b32 v{vT+13}, 0"); a(f"v_mov_b32 v{vT+14}, 0"); a(f"v_mov_b32 v{vT+15}, 0")
        a(f"v_cmp_eq_u32 vcc, 1, v{vT+1}"); a(f"v_cndmask_b32 v{vT+15}, v{vT+15}, v{vT+6}, vcc")
        a(f"v_cmp_eq_u32 vcc, 2, v{vT+1}"); a(f"v_cndmask_b32 v{vT+15}, v{vT+15}, v{d0}, vcc")
        a(f"v_cmp_eq_u32 vcc, 3, v{vT+1}"); a(f"v_cndmask_b32 v{vT+15}, v{vT+15}, v{vT+7}, vcc"); a(f"v_cndmask_b32 v{vT+14}, v{vT+14}, v{vT+6}, vcc")
        a("s_mov_b64 exec, 0xff")
        a(f"ds_write_b128 v{vT+2}, v[{vT+8}:{vT+11}]")
        a(f"ds_write_b128 v{vT+2}, v[{vT+12}:{vT+15}] offset:16")
        a("s_mov_b64 exec, -1")
        a("s_waitcnt lgkmcnt(0)")
        a("s_barrier")
        if self.done_after("g1"): a("s_barrier"); a("s_branch L_exit"); return
        if self.done_after("conv"): a("s_barrier"); a("s_branch L_exit"); return
        a(f"s_mul_i32 s{sT}, s{sKh}, {1792*2048}"); a(f"s_lshl_b32 s{sT+1}, s{sC}, 8"); a(f"s_add_u32 s{sT}, s{sT}, s{sT+1}")
        srd(a, SRD_A, sW2, 3584*2048, add=f"s{sT}")
        a(f"v_lshrrev_b32 v{vT}, 4, v{vLane}"); a(f"v_and_b32 v{vT+1}, 15, v{vLane}")
        for ii in range(8):
            a(f"v_add_u32 v{vT+2}, {4*ii}, v{vT}"); a(f"v_and_b32 v{vT+3}, 7, v{vT+2}"); a(f"v_lshlrev_b32 v{vT+3}, 1, v{vT+3}")
            a(f"v_xor_b32 v{vT+3}, v{vT+3}, v{vT+1}"); a(f"v_lshlrev_b32 v{vT+3}, 4, v{vT+3}")
            a(f"s_lshl_b32 s{sT}, s{lw}, 5"); a(f"v_add_u32 v{vT+2}, s{sT}, v{vT+2}"); a(f"v_lshlrev_b32 v{vT+2}, 11, v{vT+2}")
            a(f"v_add_u32 v{vB+ii}, v{vT+2}, v{vT+3}")
            if ii % 4: a(f"v_subrev_u32 v{vB+ii}, {1024*(ii%4)}, v{vB+ii}")
        a(f"s_lshl_b32 s{sM0B}, s{lw}, 13"); a(f"s_add_u32 s{sM0B}, s{sM0B}, {B2OFF}")
        a(f"s_mul_i32 s{sKA}, s{sRb2}, {112*8192}"); a(f"s_mul_i32 s{sT}, s{sKh}, {56*8192}"); a(f"s_add_u32 s{sKA}, s{sKA}, s{sT}")
        a(f"s_lshl_b32 s{sT}, s{lw}, 13"); a(f"s_add_u32 s{sKA}, s{sKA}, s{sT}"); a(f"s_add_u32 s{sKA}, s{sKA}, {H_OFF}")
        a(f"s_mov_b32 s{sKB}, 0"); a(f"s_mov_b32 s{sSlotW}, 0")
        def stage2():
            dmaA(f"s{sSlotW}", f"s{sKA}")
            for ii in range(8):
                if ii == 0: a(f"s_add_u32 m0, s{sSlotW}, s{sM0B}")
                elif ii % 4 == 0: a("s_add_u32 m0, m0, 4096")
                off = f" offset:{1024*(ii%4)}" if ii % 4 else ""
                a(f"buffer_load_dwordx4 v{vB+ii}, s[{SRD_A}:{SRD_A+3}], s{sKB} offen{off} lds")
            a(f"s_add_u32 s{sKA}, s{sKA}, 16384"); a(f"s_add_u32 s{sKB}, s{sKB}, {64*2048}")
            a(f"s_add_u32 s{sSlotW}, s{sSlotW}, {SLOT2}"); a(f"s_and_b32 s{sSlotW}, s{sSlotW}, {4*SLOT2-1}")
        a(f"s_lshl_b32 s{sT+2}, s{sRb2}, 7"); a(f"s_lshl_b32 s{sT+3}, s{sKh}, 6"); a(f"s_add_u32 s{sT+2}, s{sT+2}, s{sT+3}"); a(f"s_add_u32 s{sT+2}, s{sT+2}, {HF}")
        poll(a, vT, f"s{sT+2}", 8, vT+2, "h")
        Lw = a.newlabel("L_cnt"); Lwd = a.newlabel("L_cntd")
        a(f"v_mov_b32 v{vT+2}, {MISC+8}"); a(f"s_mov_b32 s{sPoll}, {POLL_MAX}")
        a.label(Lw)
        a(f"ds_read_b32 v{vT}, v{vT+2}"); a("s_waitcnt lgkmcnt(0)")
        a(f"v_readfirstlane_b32 s{sT}, v{vT}")
        a(f"s_cmp_ge_u32 s{sT}, 2"); a(f"s_cbranch_scc1 {Lwd}")
        a(f"s_sub_u32 s{sPoll}, s{sPoll}, 1"); a(f"s_cmp_eq_u32 s{sPoll}, 0"); a(f"s_cbranch_scc1 {Lwd}")
        a("s_sleep 1"); a(f"s_branch {Lw}")
        a.label(Lwd)
        stage2(); stage2()
        a("s_waitcnt vmcnt(16)")
        a("s_barrier")
        stage2(); stage2()
        a(f"s_mov_b32 s{sIt}, 24")
        a.label("L_l2")
        a("s_waitcnt vmcnt(32)"); a("s_barrier")
        stage2()
        a(f"s_sub_u32 s{sIt}, s{sIt}, 1"); a(f"s_cmp_lg_u32 s{sIt}, 0"); a("s_cbranch_scc1 L_l2")
        a(f"v_lshrrev_b32 v{vT}, 4, v{vLane}"); a(f"v_and_b32 v{vT+1}, 15, v{vLane}")
        for ii in range(8):
            a(f"v_add_u32 v{vT+2}, {4*ii}, v{vT}"); a(f"v_and_b32 v{vT+3}, 7, v{vT+2}"); a(f"v_lshlrev_b32 v{vT+3}, 1, v{vT+3}")
            a(f"v_xor_b32 v{vT+3}, v{vT+3}, v{vT+1}"); a(f"v_lshlrev_b32 v{vT+3}, 4, v{vT+3}")
            a(f"v_lshlrev_b32 v{vT+2}, 12, v{vT+2}")
            a(f"v_add_u32 v{vB+ii}, v{vT+2}, v{vT+3}")
            if ii % 4: a(f"v_subrev_u32 v{vB+ii}, {1024*(ii%4)}, v{vB+ii}")
        a(f"s_lshl_b32 s{sT}, s{sC}, 7"); a(f"s_lshl_b32 s{sT+1}, s{lw}, 6"); a(f"s_add_u32 s{sT}, s{sT}, s{sT+1}")
        a(f"s_lshl_b32 s{sT+1}, s{sKh}, 5"); a(f"s_add_u32 s{sT}, s{sT}, s{sT+1}"); a(f"s_lshl_b32 s{sT}, s{sT}, 12")
        a(f"s_lshl_b32 s{sT+1}, s{sRb2}, 8"); a(f"s_add_u32 s{sT}, s{sT}, s{sT+1}"); a(f"s_add_u32 s{sT}, s{sT}, {YT_OFF}")
        a("s_waitcnt vmcnt(32)"); a("s_barrier")
        a(f"s_lshl_b32 s{sT+1}, s{lw}, 13"); a(f"s_add_u32 m0, s{sT+1}, {YTL}")
        for ii in range(8):
            if ii == 4: a("s_add_u32 m0, m0, 4096")
            off = f" offset:{1024*(ii%4)}" if ii % 4 else ""
            a(f"buffer_load_dwordx4 v{vB+ii}, {WS}, s{sT} offen{off} lds")
        a("s_waitcnt vmcnt(24)"); a("s_barrier")
        a("s_waitcnt vmcnt(8)"); a("s_barrier")
        a("s_barrier")
        a("s_waitcnt vmcnt(0)"); a("s_barrier")
        a("s_barrier")
        a("s_branch L_exit")

    def role_x(self):
        a = self.a
        WS = f"s[{SRD_WS}:{SRD_WS+3}]"
        a.label("L_roleX")
        xw = 39
        a(f"s_sub_u32 s{xw}, s{sLw}, 2")
        vT = 32
        srd(a, SRD_B, sDBG, 256)
        a(f"s_cmp_eq_u32 s{xw}, 1"); a("s_cbranch_scc1 L_x7")
        a(f"v_mov_b32 v{vT}, 0"); a(f"v_mov_b32 v{vT+1}, 0"); a(f"v_mov_b32 v{vT+2}, {MISC+8}")
        a(f"ds_write_b64 v{vT+2}, v[{vT}:{vT+1}]")
        a("s_branch L_xt")
        a.label("L_x7")
        a(f"v_mov_b32 v{vT+2}, 0")
        a("s_cmp_lg_u32 s2, 0"); a("s_cbranch_scc1 L_x7p")
        a(f"s_memrealtime s[{sT}:{sT+1}]"); a("s_waitcnt lgkmcnt(0)")
        a(f"s_or_b32 s{sT}, s{sT}, 1")
        a(f"v_mov_b32 v{vT}, s{sT}"); a(f"v_mov_b32 v{vT+1}, s{sT+1}")
        a("s_mov_b64 exec, 1")
        a(f"buffer_store_dwordx2 v[{vT}:{vT+1}], v{vT+2}, s[{SRD_B}:{SRD_B+3}], 0 offen sc1")
        a("s_mov_b64 exec, -1")
        a.label("L_x7p")
        a.label("L_xt")
        srd(a, SRD_A, sW1, 1024*7168)
        a(f"s_and_b32 s{sT}, s2, 7"); a(f"s_lshr_b32 s{sT}, s{sT}, 1"); a(f"s_mul_i32 s{sT}, s{sT}, 1792")
        a(f"s_lshr_b32 s{sT+1}, s2, 3"); a(f"s_add_u32 s{sT+1}, s{sT+1}, 192"); a(f"s_mul_i32 s{sT+1}, s{sT+1}, 7168"); a(f"s_add_u32 s{sT}, s{sT}, s{sT+1}")
        if self.opt.get("touch", True):
            for t in range(6):
                a(f"s_lshl_b32 s{sT+1}, s{xw}, 6"); a(f"s_add_u32 s{sT+1}, s{sT+1}, {128*t}")
                a(f"v_add_u32 v{vT+4}, s{sT+1}, v{vLane}")
                a(f"v_mul_u32_u24 v{vT+5}, 2341, v{vT+4}"); a(f"v_lshrrev_b32 v{vT+5}, 16, v{vT+5}")
                a(f"v_mul_u32_u24 v{vT+6}, 28, v{vT+5}"); a(f"v_sub_u32 v{vT+6}, v{vT+4}, v{vT+6}"); a(f"v_lshlrev_b32 v{vT+6}, 6, v{vT+6}")
                a(f"s_mov_b32 s{sT+2}, {32*7168}"); a(f"v_mul_lo_u32 v{vT+5}, s{sT+2}, v{vT+5}"); a(f"v_add3_u32 v{vT+5}, v{vT+5}, v{vT+6}, s{sT}")
                a(f"buffer_load_dword v{64+t}, v{vT+5}, s[{SRD_A}:{SRD_A+3}], 0 offen")
        a(f"s_cmp_eq_u32 s{xw}, 0"); a("s_cbranch_scc1 L_x6b0")
        a(f"s_mov_b32 s{sPoll}, {POLL_MAX}")
        a.label("L_non")
        a(f"buffer_load_dwordx2 v[{vT}:{vT+1}], v{vT+2}, s[{SRD_B}:{SRD_B+3}], 0 offen sc1")
        a("s_waitcnt vmcnt(0)")
        a(f"v_readfirstlane_b32 s{sNon}, v{vT}"); a(f"v_readfirstlane_b32 s{sNon+1}, v{vT+1}")
        a(f"s_cmp_lg_u32 s{sNon}, 0"); a("s_cbranch_scc1 L_nond")
        a(f"s_sub_u32 s{sPoll}, s{sPoll}, 1"); a(f"s_cmp_eq_u32 s{sPoll}, 0"); a("s_cbranch_scc1 L_nond")
        a("s_sleep 1"); a("s_branch L_non")
        a.label("L_nond")
        a(f"v_mov_b32 v{vT+2}, {MISC}"); a(f"ds_write_b64 v{vT+2}, v[{vT}:{vT+1}]")
        a.label("L_x6b0")
        a("s_waitcnt lgkmcnt(0)")
        a("s_barrier")
        self.get_nonce(vT)
        a(f"s_cmp_eq_u32 s{xw}, 0"); a("s_cbranch_scc1 L_xnf")
        a(f"s_lshl_b32 s{sT}, s{sRb1}, 7"); a(f"s_lshl_b32 s{sT+1}, s{sJ}, 3"); a(f"s_add_u32 s{sT}, s{sT}, s{sT+1}"); a(f"s_add_u32 s{sT}, s{sT}, {XNF}")
        flag_write(a, vT, f"s{sT}")
        a.label("L_xnf")
        if self.done_after("ln"): a("s_branch L_exit"); return
        a("s_barrier")
        if self.done_after("u"): a("s_barrier"); a("s_branch L_exit"); return
        a("s_barrier")
        srd(a, SRD_A, sW2, 3584*2048); srd(a, SRD_B, sSSM, 1024*4096)
        a(f"v_lshlrev_b32 v{vT+8}, 6, v{vLane}")
        a(f"s_mul_i32 s{sKA}, s2, 28672"); a(f"s_lshl_b32 s{sKB}, s2, 14")
        for i in range(16):
            if i == 13:
                Ls = a.newlabel("L_sk")
                a(f"s_cmp_eq_u32 s{xw}, 1"); a(f"s_cbranch_scc1 {Ls}")
                a(f"s_lshr_b32 s{sT+2}, s2, 4"); a(f"s_lshl_b32 s{sT+2}, s{sT+2}, 7"); a(f"s_add_u32 s{sT+2}, s{sT+2}, {UF}")
                poll(a, vT, f"s{sT+2}", 16, vT+2, "u")
                a.label(Ls)
            a("s_barrier")
            if i == 0:
                Ls = a.newlabel("L_sk")
                a(f"s_cmp_eq_u32 s{xw}, 1"); a(f"s_cbranch_scc1 {Ls}")
                a(f"s_lshl_b32 s{sT}, s{sJ}, 7"); a(f"s_lshl_b32 s{sT+1}, s{sRb1}, 3"); a(f"s_add_u32 s{sT}, s{sT}, s{sT+1}"); a(f"s_add_u32 s{sT}, s{sT}, {UF}")
                flag_write(a, vT, f"s{sT}")
                a.label(Ls)
            if self.opt.get("touch", True) and 2 <= i <= 8:
                Ls = a.newlabel("L_sk")
                a(f"s_cmp_eq_u32 s{xw}, 1"); a(f"s_cbranch_scc1 {Ls}")
                a(f"buffer_load_dword v{64+i}, v{vT+8}, s[{SRD_A}:{SRD_A+3}], s{sKA} offen"); a(f"s_add_u32 s{sKA}, s{sKA}, 4096")
                a.label(Ls)
            if self.opt.get("touch", True) and 5 <= i <= 8:
                Ls = a.newlabel("L_sk")
                a(f"s_cmp_eq_u32 s{xw}, 0"); a(f"s_cbranch_scc1 {Ls}")
                a(f"buffer_load_dword v{64+i}, v{vT+8}, s[{SRD_B}:{SRD_B+3}], s{sKB} offen"); a(f"s_add_u32 s{sKB}, s{sKB}, 4096")
                a.label(Ls)
        a("s_barrier")
        a(f"v_lshlrev_b32 v{vT}, 4, v{vLane}"); a(f"s_mul_i32 s{sT}, s{xw}, 28672"); a(f"v_add_u32 v{vT+1}, s{sT}, v{vT}")
        a(f"s_mul_i32 s{sT+1}, s{sRb1}, {112*8192}"); a(f"s_mul_i32 s{sT+2}, s{sJ}, {7*8192}"); a(f"s_add_u32 s{sT+1}, s{sT+1}, s{sT+2}")
        a(f"s_add_u32 s{sT+1}, s{sT+1}, s{sT}"); a(f"s_add_u32 s{sT+1}, s{sT+1}, {H_OFF}")
        for grp in range(4):
            base = 64 + 28*(grp % 2)
            for k in range(7): a(f"ds_read_b128 v[{base+4*k}:{base+4*k+3}], v{vT+1} offset:{1024*(7*grp+k)}")
            for k in range(7):
                a(f"s_waitcnt lgkmcnt({6-k})")
                a(f"buffer_store_dwordx4 v[{base+4*k}:{base+4*k+3}], v{vT}, {WS}, s{sT+1} offen sc1"); a(f"s_add_u32 s{sT+1}, s{sT+1}, 1024")
            if grp in (1, 2): pass
            if grp == 1 or grp == 2: a("s_waitcnt vmcnt(7)") if False else None
        a(f"v_mov_b32 v{vT+2}, {MISC+8}"); a(f"v_mov_b32 v{vT+3}, 1")
        a("s_mov_b64 exec, 1"); a(f"ds_add_u32 v{vT+2}, v{vT+3}"); a("s_mov_b64 exec, -1")
        a("s_waitcnt vmcnt(0)")
        a("s_mov_b64 exec, 1"); a(f"ds_add_rtn_u32 v{vT+4}, v{vT+2}, v{vT+3} offset:4"); a("s_mov_b64 exec, -1")
        a("s_waitcnt lgkmcnt(0)")
        a(f"v_readfirstlane_b32 s{sT}, v{vT+4}")
        Ls = a.newlabel("L_sk")
        a(f"s_cmp_eq_u32 s{sT}, 0"); a(f"s_cbranch_scc1 {Ls}")
        a(f"s_lshl_b32 s{sT}, s{sRb1}, 7"); a(f"s_lshl_b32 s{sT+1}, s{sJ}, 3"); a(f"s_add_u32 s{sT}, s{sT}, s{sT+1}"); a(f"s_add_u32 s{sT}, s{sT}, {HF}")
        flag_write(a, vT+4, f"s{sT}")
        a.label(Ls)
        if self.done_after("g1"): a("s_waitcnt vmcnt(0)"); a("s_barrier"); a("s_branch L_exit"); return
        if self.done_after("conv"): a("s_waitcnt vmcnt(0)"); a("s_barrier"); a("s_branch L_exit"); return
        a("s_barrier")
        srd(a, SRD_A, sX, 4 << 20)
        a(f"v_lshrrev_b32 v{vT}, 2, v{vLane}"); a(f"v_and_b32 v{vT+1}, 3, v{vLane}"); a(f"v_lshrrev_b32 v{vT+2}, 4, v{vLane}")
        a(f"v_sub_u32 v{vT+2}, 0, v{vT+2}"); a(f"v_and_b32 v{vT+2}, 3, v{vT+2}"); a(f"v_xor_b32 v{vT+1}, v{vT+1}, v{vT+2}")
        a(f"v_lshlrev_b32 v{vT}, 11, v{vT}"); a(f"v_lshlrev_b32 v{vT+1}, 4, v{vT+1}"); a(f"v_add_u32 v{vT}, v{vT}, v{vT+1}")
        a(f"s_lshl_b32 s{sT}, s{sRb2}, 18"); a(f"s_lshl_b32 s{sT+1}, s{sC}, 8"); a(f"s_add_u32 s{sT}, s{sT}, s{sT+1}")
        a(f"s_lshl_b32 s{sT+1}, s{xw}, 7"); a(f"s_add_u32 s{sT}, s{sT}, s{sT+1}"); a(f"s_lshl_b32 s{sT+1}, s{sKh}, 6"); a(f"s_add_u32 s{sT}, s{sT}, s{sT+1}")
        a(f"s_lshl_b32 s{sT+1}, s{xw}, 13"); a(f"s_add_u32 m0, s{sT+1}, {XT}")
        for ii in range(8):
            a(f"buffer_load_dwordx4 v{vT}, s[{SRD_A}:{SRD_A+3}], s{sT} offen lds")
            if ii < 7: a(f"s_add_u32 s{sT}, s{sT}, 32768"); a("s_add_u32 m0, m0, 1024")
        a(f"v_lshlrev_b32 v{vT}, 4, v{vLane}")
        a(f"s_lshl_b32 s{sT}, s{sC}, 2"); a(f"s_lshl_b32 s{sT+1}, s{xw}, 1"); a(f"s_add_u32 s{sT}, s{sT}, s{sT+1}"); a(f"s_add_u32 s{sT}, s{sT}, s{sKh}"); a(f"s_lshl_b32 s{sT}, s{sT}, 13")
        a(f"s_lshl_b32 s{sT+1}, s{sRb2}, 18"); a(f"s_add_u32 s{sT}, s{sT}, s{sT+1}")
        if XN_OFF: a(f"s_add_u32 s{sT}, s{sT}, {XN_OFF}")
        a(f"s_lshl_b32 s{sT+1}, s{xw}, 13"); a(f"s_add_u32 m0, s{sT+1}, {XNT}")
        for h in range(2):
            if h: a("s_add_u32 m0, m0, 4096"); a(f"s_add_u32 s{sT}, s{sT}, 4096")
            for k in range(4):
                off = f" offset:{1024*k}" if k else ""
                a(f"buffer_load_dwordx4 v{vT}, {WS}, s{sT} offen{off} lds")
        for i in range(28):
            if i == 20:
                a(f"s_lshl_b32 s{sT+2}, s{sC}, 5"); a(f"s_lshl_b32 s{sT+3}, s{xw}, 4"); a(f"s_add_u32 s{sT+2}, s{sT+2}, s{sT+3}")
                a(f"s_lshl_b32 s{sT+3}, s{sKh}, 3"); a(f"s_add_u32 s{sT+2}, s{sT+2}, s{sT+3}"); a(f"s_lshl_b32 s{sT+2}, s{sT+2}, 3"); a(f"s_add_u32 s{sT+2}, s{sT+2}, {YF}")
                poll(a, vT, f"s{sT+2}", 8, vT+2, "y")
            a("s_barrier")
            if i == 0:
                Ls = a.newlabel("L_sk")
                a(f"s_cmp_eq_u32 s{xw}, 1"); a(f"s_cbranch_scc1 {Ls}")
                a(f"s_lshl_b32 s{sT}, s2, 3"); a(f"s_add_u32 s{sT}, s{sT}, {YF}")
                flag_write(a, vT, f"s{sT}")
                a.label(Ls)
        a("s_waitcnt vmcnt(0)")
        a("s_barrier")
        Ls = a.newlabel("L_sk")
        a(f"s_cmp_eq_u32 s{xw}, 1"); a(f"s_cbranch_scc1 {Ls}")
        a(f"s_lshl_b32 s{sT}, s2, 7"); a(f"s_add_u32 s{sT}, s{sT}, {PF}")
        flag_write(a, vT, f"s{sT}")
        a(f"s_xor_b32 s{sT+2}, s2, 128"); a(f"s_lshl_b32 s{sT+2}, s{sT+2}, 7"); a(f"s_add_u32 s{sT+2}, s{sT+2}, {PF}")
        poll(a, vT, f"s{sT+2}", 1, vT+2, "p")
        a.label(Ls)
        a("s_barrier")
        a("s_branch L_exit")

    def build(self):
        a = self.a
        kernel_header(a, NAME)
        self.prologue()
        self.role_c()
        self.role_l()
        self.role_x()
        a.label("L_exit"); a("s_endpgm")
        kernel_desc(a, NAME, vgpr=256, sgpr=102, accum=256)
        lines, n = fix_hazards(a.L)
        hdr = open("parallel_sum__ssm_conv_h3__dense_activation_relu__prompt.s.ref").read().split("\n")
        top = [l for l in hdr if l.startswith(";") and "@launch" not in l and not l.startswith("; Override") and not l.startswith("; grid=")]
        top = [l for l in top if l.startswith("; Kernarg") or l.startswith(";   offset")]
        text = "\n".join(top) + f"\n; @launch grid=(256,1,1) block=(512,1,1) lds={LDS_SIZE}\n" + '.amdgcn_target "amdgcn-amd-amdhsa--gfx950"\n' + "\n".join(lines) + "\n"
        return text, n

if __name__ == "__main__":
    import subprocess
    upto = sys.argv[1] if len(sys.argv) > 1 else "all"
    out = sys.argv[2] if len(sys.argv) > 2 else "k.s"
    t, n = Gen(upto=upto, stamps="stamps" in sys.argv).build()
    open(out, "w").write(t)
    r = subprocess.run(f"clang -x assembler -target amdgcn-amd-amdhsa -mcpu=gfx950 -c {out} -o k.o", shell=True)
    print("asm rc", r.returncode, "nops added", n, "lines", t.count("\n"))
    if r.returncode == 0:
        print(subprocess.run("llvm-size k.o 2>/dev/null || llvm-readelf -S k.o | grep text", shell=True, capture_output=True, text=True).stdout)
```
